```python
import torch

def _softmax(x, axis=-1):
    return torch.softmax(x, dim=axis)
def _gelu(x):
    return torch.nn.functional.gelu(x, approximate="tanh")
def _silu(x):
    return torch.nn.functional.silu(x)
def _sigmoid(x):
    return torch.sigmoid(x)
def _layernorm(x, axis=-1, eps=1e-5):
    m = x.mean(dim=axis, keepdim=True)
    v = x.var(dim=axis, keepdim=True, unbiased=False)
    return (x - m) / torch.sqrt(v + eps)
def _scatter_add(tgt, idx, src, axis=0):
    return tgt.clone().index_add_(axis, idx, src)
def _segment_sum(src, seg, n):
    out = torch.zeros((n,) + src.shape[1:], dtype=src.dtype)
    return out.index_add_(0, seg, src)
def _pad(x, pw):
    flat = tuple(v for pair in reversed(pw) for v in pair)
    return torch.nn.functional.pad(x, flat)

kernel_name = 'interleave_layers__linear_kernel_hedgehog__dense_activation_squared_relu__prompt'

def setup_inputs():

    _w = (lambda a: (lambda t: t.to(torch.bfloat16) if t.is_floating_point() else t)(torch.as_tensor(a)))
    def _A_setup():
        B, S, D, H = 1, 2048, 448, 16
        Dh = D // H
        return {
            "x": _w((lambda *s: torch.randn(*s, dtype=torch.bfloat16) * 0.05)(B, S, D)),
            "wqkv": _w((lambda *s: torch.randn(*s, dtype=torch.bfloat16) * 0.2)(D, 3 * D)),
            "w_phi": _w((lambda *s: torch.randn(*s, dtype=torch.bfloat16) * 0.2)(H, Dh, Dh) * (Dh ** -0.5)),
            "wo": _w((lambda *s: torch.randn(*s, dtype=torch.bfloat16) * 0.05)(D, D)),
        }
    _A_in = _A_setup()

    def _B_setup():
        B, S, D, F = 1, 2048, 448, 1792
        return {
            "x": _w((lambda *s: torch.randn(*s, dtype=torch.bfloat16) * 0.05)(B, S, D)),
            "w1": _w((lambda *s: torch.randn(*s, dtype=torch.bfloat16) * 0.05)(D, F)),
            "b1": _w((lambda *s: torch.randn(*s, dtype=torch.bfloat16) * 0.2)(F)),
            "w2": _w((lambda *s: torch.randn(*s, dtype=torch.bfloat16) * 0.05)(F, D)),
            "b2": _w((lambda *s: torch.randn(*s, dtype=torch.bfloat16) * 0.4)(D)),
        }
    _B_in = _B_setup()

    return {
        "A_x": _A_in["x"],
        "A_wqkv": _A_in["wqkv"],
        "A_w_phi": _A_in["w_phi"],
        "A_wo": _A_in["wo"],
        "B_x": _B_in["x"],
        "B_w1": _B_in["w1"],
        "B_b1": _B_in["b1"],
        "B_w2": _B_in["w2"],
        "B_b2": _B_in["b2"],
    }

def reference(A_x, A_wqkv, A_w_phi, A_wo, B_x, B_w1, B_b1, B_w2, B_b2):
    def _A_ref(x, wqkv, w_phi, wo):
        B, S, D = x.shape
        H = 16; Dh = D // H
        qkv = (lambda x, *d: x.permute(*d))((x @ wqkv).reshape(B, S, 3, H, Dh), 2, 0, 3, 1, 4)
        q, k, v = qkv[0], qkv[1], qkv[2]
        pq = torch.einsum("bhsd,hdf->bhsf", q, w_phi)
        pk = torch.einsum("bhsd,hdf->bhsf", k, w_phi)
        phi_q = torch.concatenate([_softmax(pq, axis=-1), _softmax(-pq, axis=-1)], axis=-1)
        phi_k = torch.concatenate([_softmax(pk, axis=-1), _softmax(-pk, axis=-1)], axis=-1)
        kv = torch.einsum("bhsf,bhsd->bhfd", phi_k, v)
        z  = torch.einsum("bhsf->bhf", phi_k)
        num = torch.einsum("bhqf,bhfd->bhqd", phi_q, kv)
        den = torch.einsum("bhqf,bhf->bhq", phi_q, z)[..., None] + 1e-6
        o = num / den
        return (lambda x, *d: x.permute(*d))(o, 0, 2, 1, 3).reshape(B, S, D) @ wo

    def _B_ref(x, w1, b1, w2, b2):
        h = torch.einsum("bsd,df->bsf", x, w1) + b1
        zero = torch.zeros_like(h)
        r = torch.where(h > zero, h, zero)
        h = r * r
        out = torch.einsum("bsf,fd->bsd", h, w2) + b2
        return out

    x = A_x
    x = x + _A_ref(_layernorm(x, axis=-1), A_wqkv, A_w_phi, A_wo)
    x = x + _B_ref(_layernorm(x, axis=-1), B_w1, B_b1, B_w2, B_b2)
    x = x + _A_ref(_layernorm(x, axis=-1), A_wqkv, A_w_phi, A_wo)
    x = x + _B_ref(_layernorm(x, axis=-1), B_w1, B_b1, B_w2, B_b2)
    return x
```

```python
S=2048; D=448; H=16; DH=28; F=1792
KB=1024
def al(x): return (x+4095)//4096*4096
off=0
def alloc(n):
    global off
    o=off; off=al(off+n); return o
XT  = alloc(128*14*KB)
WQ  = alloc(16*84*KB)
WPHI= alloc(32*KB)
WO  = alloc(28*16*KB)
W1  = alloc(14*14*8*KB)
W2  = alloc(28*56*KB)
KV0 = alloc(128*KB)
KV1 = alloc(128*KB)
PHIQ= alloc(128*16*2*KB)
X1  = alloc(128*14*KB)
X2  = alloc(128*14*KB)
X3  = alloc(128*14*KB)
HB  = alloc(128*56*KB)
WS_USED = off
WS_SIZE = 268435456
```

```python
from core import *
from layout import *
from k0 import srd
LOG2E = '0x3fb8aa3b'
def prologue(a, nwg, ws_srd=8):
    a.e('s_load_dwordx2 s[4:5], s[0:1], 88')
    a.e('s_cmp_ge_u32 s2, %d' % nwg)
    a.e('s_cbranch_scc1 %s' % a.endlabel)
    a.e('v_lshrrev_b32 v1, 6, v0')
    a.e('v_and_b32 v0, 63, v0')
    a.e('v_readfirstlane_b32 s3, v1')
    a.e('v_lshlrev_b32 v1, 4, v0')
    a.e('v_and_b32 v2, 15, v0')
    a.e('v_lshrrev_b32 v3, 4, v0')
    a.e('s_waitcnt lgkmcnt(0)')
    srd(a, ws_srd, 4, WS_SIZE)
def bf16r(a, dst, src, tmp):
    a.e('v_cvt_pk_bf16_f32 v%d, v%d, v%d' % (tmp, src, src))
    a.e('v_lshlrev_b32 v%d, 16, v%d' % (dst, tmp))
def unpack(a, dlo, dhi, p):
    a.e('v_lshlrev_b32 v%d, 16, v%d' % (dlo, p))
    a.e('v_and_b32 v%d, 0xffff0000, v%d' % (dhi, p))
def xreduce(a, x, tmp, op):
    a.e('v_mov_b32 v%d, v%d' % (tmp, x))
    a.e('v_permlane16_swap_b32 v%d, v%d' % (x, tmp))
    a.e('%s v%d, v%d, v%d' % (op, x, x, tmp))
    a.e('v_mov_b32 v%d, v%d' % (tmp, x))
    a.e('v_permlane32_swap_b32 v%d, v%d' % (x, tmp))
    a.e('%s v%d, v%d, v%d' % (op, x, x, tmp))
def ln_stats(a, vsum, vsq, vmb, vrinv, t0, t1):
    a.e('v_mul_f32 v%d, 0x3b124925, v%d' % (t0, vsum))
    a.e('v_mul_f32 v%d, 0x3b124925, v%d' % (t1, vsq))
    a.e('v_fma_f32 v%d, -v%d, v%d, v%d' % (t1, t0, t0, t1))
    a.e('v_max_f32 v%d, 0, v%d' % (t1, t1))
    bf16r(a, vmb, t0, t0)
    bf16r(a, t1, t1, t0)
    a.e('v_add_f32 v%d, 0x3727c5ac, v%d' % (t1, t1))
    bf16r(a, t1, t1, t0)
    a.e('v_sqrt_f32 v%d, v%d' % (t1, t1))
    bf16r(a, t1, t1, t0)
    a.e('v_rcp_f32 v%d, v%d' % (vrinv, t1))
```

```python
import re

def _regs(tok):
    tok = tok.strip()
    m = re.fullmatch(r'(-?)(?:abs\()?([vas])(\d+)\)?', tok)
    if m: return [(m.group(2), int(m.group(3)))]
    m = re.fullmatch(r'([vas])\[(\d+):(\d+)\]', tok)
    if m: return [(m.group(1), i) for i in range(int(m.group(2)), int(m.group(3)) + 1)]
    if tok == 'vcc': return [('s', 106), ('s', 107)]
    if tok == 'm0': return [('m', 0)]
    if tok == 'exec': return [('s', 126), ('s', 127)]
    return []

TRANS = ('v_exp_f32', 'v_rcp_f32', 'v_rsq_f32', 'v_sqrt_f32', 'v_log_f32', 'v_sin_f32', 'v_cos_f32')

class Asm:
    def __init__(self):
        self.lines = []
        self.slot = 0
        self.reset_state()
        self.vm = []
        self.lg = []
    def reset_state(self):
        self.valu_w = {}; self.trans_w = {}; self.mfma_w = {}; self.mfma_wrange = {}
        self.mfma_c = {}; self.store_r = {}; self.sgpr_w = {}; self.m0_w = -100
    def raw(self, s):
        self.lines.append(s)
    def comment(self, s):
        self.lines.append('    ; ' + s)
    def label(self, l):
        self.nop(12)
        self.lines.append(l + ':')
    def nop(self, n):
        while n > 0:
            k = min(n, 16)
            self.lines.append('    s_nop %d' % (k - 1))
            self.slot += k
            n -= k
    def e(self, s):
        s = s.strip()
        mn, _, rest = s.partition(' ')
        ops = []; depth = 0; cur = ''
        for ch in rest:
            if ch == '[': depth += 1
            if ch == ']': depth -= 1
            if ch == ',' and depth == 0:
                ops.append(cur.strip()); cur = ''
            else:
                cur += ch
        if cur.strip(): ops.append(cur.strip())
        mods = ''
        if ops:
            parts = ops[-1].split(' ', 1)
            if len(parts) == 2:
                ops[-1] = parts[0]; mods = parts[1]
        dst = []; src = []
        kind = 'S'
        if mn.startswith('v_mfma'):
            kind = 'M'
            dst = _regs(ops[0]); A = _regs(ops[1]); B = _regs(ops[2]); C = _regs(ops[3])
        elif mn.startswith('v_'):
            kind = 'T' if mn in TRANS else 'V'
            if mn.startswith('v_permlane'):
                dst = _regs(ops[0]) + _regs(ops[1]); src = dst[:]
            elif mn.startswith('v_add_co') or mn.startswith('v_sub_co'):
                dst = _regs(ops[0]) + _regs(ops[1]); src = [r for o in ops[2:] for r in _regs(o)]
            else:
                dst = _regs(ops[0]); src = [r for o in ops[1:] for r in _regs(o)]
                if mn.startswith('v_fmac') or mn.startswith('v_cndmask') and len(ops) == 3:
                    src += dst
                if mn.startswith('v_cndmask') and len(ops) == 3:
                    src += _regs('vcc')
                if mn.startswith('v_cmp') and ops[0] not in ('vcc',) and not ops[0].startswith('s['):
                    pass
        elif mn.startswith('ds_'):
            kind = 'D'
            if mn.startswith('ds_read') or mn.startswith('ds_bpermute') or mn.startswith('ds_swizzle'):
                dst = _regs(ops[0]); src = [r for o in ops[1:] for r in _regs(o)]
                if 'd16' in mn: src += dst
            else:
                src = [r for o in ops for r in _regs(o)]
        elif mn.startswith('buffer_') or mn.startswith('global_'):
            kind = 'G'
            islds = ' lds' in (' ' + mods) or mods.endswith('lds') or mn.startswith('global_load_lds')
            if 'load' in mn and not islds:
                dst = _regs(ops[0]); src = [r for o in ops[1:] for r in _regs(o)]
                if 'd16' in mn: src += dst
            else:
                src = [r for o in ops for r in _regs(o)]
        else:
            kind = 'S'
        t = self.slot
        need = t
        def req(x):
            nonlocal need
            if x > need: need = x
        if kind == 'M':
            for r in A + B + C:
                if r in self.valu_w: req(self.valu_w[r] + 3)
            for r in A + B:
                if r in self.mfma_w: req(self.mfma_w[r] + 9)
            for r in C:
                if r in self.mfma_w:
                    if self.mfma_wrange.get(r) == tuple(dst) and tuple(C) == tuple(dst):
                        pass
                    else:
                        req(self.mfma_w[r] + 7)
            for r in dst:
                if r in self.store_r: req(self.store_r[r] + 3)
        elif kind in 'VT':
            for r in src + dst:
                if r in self.mfma_w: req(self.mfma_w[r] + 9)
            for r in src:
                if r in self.trans_w: req(self.trans_w[r] + 2)
                if r[0] == 's' and r in self.sgpr_w: req(self.sgpr_w[r] + 3)
            for r in dst:
                if r in self.mfma_c: req(self.mfma_c[r] + 4)
                if r in self.store_r: req(self.store_r[r] + 3)
            if mn.startswith('v_permlane') or 'dpp' in mn or 'row_' in mods or 'quad_perm' in mods:
                for r in src:
                    if r in self.valu_w: req(self.valu_w[r] + 3)
            if mn.startswith('v_readfirstlane') or mn.startswith('v_readlane'):
                for r in src:
                    if r in self.valu_w: req(self.valu_w[r] + 2)
        elif kind in 'DG':
            for r in src + dst:
                if r in self.mfma_w: req(self.mfma_w[r] + 9)
                if r[0] == 's' and r in self.sgpr_w: req(self.sgpr_w[r] + 6)
            if kind == 'G' and islds: req(self.m0_w + 2)
        if need > t:
            self.nop(need - t)
        t = self.slot
        self.lines.append('    ' + s)
        self.slot += 1
        if kind == 'M':
            for r in dst:
                self.mfma_w[r] = t; self.mfma_wrange[r] = tuple(dst)
                self.valu_w.pop(r, None); self.trans_w.pop(r, None)
            for r in C: self.mfma_c[r] = t
        elif kind in 'VT':
            for r in dst:
                if r[0] == 's':
                    self.sgpr_w[r] = t
                else:
                    self.valu_w[r] = t
                    if kind == 'T': self.trans_w[r] = t
                    else: self.trans_w.pop(r, None)
                    self.mfma_w.pop(r, None)
        elif kind == 'G':
            if ('store' in mn or 'atomic' in mn) and ('x4' in mn or 'x3' in mn):
                for r in _regs(ops[0]): self.store_r[r] = t
            for r in dst:
                self.mfma_w.pop(r, None); self.valu_w.pop(r, None); self.trans_w.pop(r, None)
        elif kind == 'D':
            for r in dst:
                self.mfma_w.pop(r, None); self.valu_w.pop(r, None); self.trans_w.pop(r, None)
        elif kind == 'S':
            if ops and ops[0] == 'm0': self.m0_w = t
    def vmem(self, s, tag=None):
        self.e(s); self.vm.append(tag)
    def lds(self, s, tag=None):
        self.e(s); self.lg.append(tag)
    def wait_vm(self, tag=None, extra=''):
        if tag is None:
            n = 0; self.vm = []
        else:
            idx = max(i for i, x in enumerate(self.vm) if x == tag) if tag in self.vm else -1
            if idx < 0: return
            n = len(self.vm) - 1 - idx
            self.vm = self.vm[idx + 1:]
        self.e('s_waitcnt vmcnt(%d)%s' % (min(n, 63), extra))
    def wait_lg(self, tag=None):
        if tag is None:
            n = 0; self.lg = []
        else:
            idx = max(i for i, x in enumerate(self.lg) if x == tag) if tag in self.lg else -1
            if idx < 0: return
            n = len(self.lg) - 1 - idx
            self.lg = self.lg[idx + 1:]
        self.e('s_waitcnt lgkmcnt(%d)' % min(n, 15))
    def text(self):
        return '\n'.join(self.lines) + '\n'

def vr(b, n=1):
    return 'v%d' % b if n == 1 else 'v[%d:%d]' % (b, b + n - 1)
def ar(b, n=1):
    return 'a%d' % b if n == 1 else 'a[%d:%d]' % (b, b + n - 1)
def sr(b, n=1):
    return 's%d' % b if n == 1 else 's[%d:%d]' % (b, b + n - 1)
```

```python
from core import *
from layout import *

def magic(d):
    return (2**32 + d - 1)//d

def srd(a, base, ptr, size):
    a.e('s_mov_b32 s%d, s%d' % (base, ptr))
    a.e('s_and_b32 s%d, s%d, 0xffff' % (base+1, ptr+1))
    a.e('s_mov_b32 s%d, 0x%x' % (base+2, size))
    a.e('s_mov_b32 s%d, 0x00020000' % (base+3))

JOBS = [('x',1792),('wq',1344),('wo',448),('w1',1568),('w2',1568),('wphi',32),('zero',256)]
K0_WGS = sum(n for _,n in JOBS)//4

def gen_k0(a):
    a.e('s_load_dwordx4 s[4:7], s[0:1], 0')
    a.e('s_load_dwordx4 s[8:11], s[0:1], 16')
    a.e('s_load_dwordx2 s[12:13], s[0:1], 40')
    a.e('s_load_dwordx2 s[14:15], s[0:1], 56')
    a.e('s_load_dwordx2 s[16:17], s[0:1], 88')
    a.e('s_cmp_ge_u32 s2, %d' % K0_WGS)
    a.e('s_cbranch_scc1 K0_END')
    a.e('v_lshrrev_b32 v1, 6, v0')
    a.e('v_and_b32 v0, 63, v0')
    a.e('v_readfirstlane_b32 s3, v1')
    a.e('v_lshlrev_b32 v2, 4, v0')
    a.e('v_and_b32 v3, 15, v0')
    a.e('v_lshrrev_b32 v4, 4, v0')
    a.e('s_lshl_b32 s18, s2, 2')
    a.e('s_add_u32 s18, s18, s3')
    a.e('s_waitcnt lgkmcnt(0)')
    srd(a, 20, 16, WS_SIZE)
    a.e('s_mov_b32 s40, 0x7fff0000')
    base = 0
    labels = []
    for name, n in JOBS:
        a.e('s_cmp_lt_u32 s18, %d' % (base+n))
        a.e('s_cbranch_scc1 K0_%s' % name)
        labels.append((name, base, n))
        base += n
    a.e('s_branch K0_END')
    def gather(srdb, ld, offA, offB, dstoff_expr_emit):
        rows = [0,1,2,3,16,17,18,19]
        for j in range(8):
            a.e('s_mov_b32 s%d, %d' % (44+j, rows[j]*ld))
        for j in range(8):
            a.e('buffer_load_ushort v%d, v%d, s[%d:%d], s%d offen' % (16+j, offA if j<4 else offB, srdb, srdb+3, 44+j))
        dstoff_expr_emit()
        a.e('s_waitcnt vmcnt(0)')
        for j in range(4):
            a.e('v_lshl_or_b32 v%d, v%d, 16, v%d' % (8+j, 17+2*j, 16+2*j))
        a.e('buffer_store_dwordx4 v[8:11], v2, s[20:23], s41 offen')
        a.e('s_branch K0_END')
    for name, base, n in labels:
        a.label('K0_%s' % name)
        a.e('s_sub_u32 s19, s18, %d' % base)
        if name == 'x':
            srd(a, 24, 4, S*D*2)
            a.e('s_mul_hi_u32 s30, s19, 0x%x' % magic(14))
            a.e('s_mul_i32 s31, s30, 14')
            a.e('s_sub_u32 s31, s19, s31')
            a.e('s_mul_i32 s32, s30, %d' % (16*896))
            a.e('s_lshl_b32 s33, s31, 6')
            a.e('s_add_u32 s32, s32, s33')
            a.e('v_mul_u32_u24 v5, 896, v3')
            a.e('v_lshl_add_u32 v5, v4, 3, v5')
            a.e('v_add_u32 v5, s32, v5')
            a.e('buffer_load_dwordx2 v[8:9], v5, s[24:27], 0 offen')
            a.e('buffer_load_dwordx2 v[10:11], v5, s[24:27], 0 offen offset:32')
            a.e('s_lshl_b32 s41, s19, 10')
            a.e('s_add_u32 s41, s41, %d' % XT)
            a.e('s_waitcnt vmcnt(0)')
            a.e('buffer_store_dwordx4 v[8:11], v2, s[20:23], s41 offen')
            a.e('s_branch K0_END')
        elif name == 'wq':
            srd(a, 24, 6, D*3*D*2)
            a.e('s_mul_hi_u32 s30, s19, 0x%x' % magic(84))
            a.e('s_mul_i32 s31, s30, 84')
            a.e('s_sub_u32 s31, s19, s31')
            a.e('s_mul_hi_u32 s32, s31, 0x%x' % magic(6))
            a.e('s_mul_i32 s33, s32, 6')
            a.e('s_sub_u32 s33, s31, s33')
            a.e('s_lshl_b32 s34, s33, 4')
            a.e('v_add_u32 v5, s34, v3')
            a.e('v_lshrrev_b32 v6, 5, v5')
            a.e('v_and_b32 v7, 31, v5')
            a.e('v_mul_u32_u24 v12, 448, v6')
            a.e('s_mul_i32 s34, s30, 28')
            a.e('v_add3_u32 v12, v12, v7, s34')
            a.e('s_lshl_b32 s34, s32, 5')
            a.e('v_lshl_add_u32 v13, v4, 2, s34')
            a.e('v_mul_u32_u24 v13, 2688, v13')
            a.e('v_lshl_add_u32 v13, v12, 1, v13')
            a.e('v_cmp_gt_u32 vcc, 28, v7')
            a.e('v_mov_b32 v14, s40')
            a.e('v_cndmask_b32 v13, v14, v13, vcc')
            def d():
                a.e('s_lshl_b32 s41, s19, 10'); a.e('s_add_u32 s41, s41, %d' % WQ)
            gather(24, 2688, 13, 13, d)
        elif name == 'wo':
            srd(a, 24, 10, D*D*2)
            a.e('s_lshr_b32 s30, s19, 4')
            a.e('s_and_b32 s31, s19, 15')
            a.e('s_lshl_b32 s34, s30, 4')
            a.e('v_add_u32 v5, s34, v3')
            a.e('s_mul_i32 s34, s31, 28')
            a.e('v_lshl_add_u32 v13, v4, 2, s34')
            a.e('v_mul_u32_u24 v13, 896, v13')
            a.e('v_lshl_add_u32 v13, v5, 1, v13')
            a.e('v_cmp_gt_u32 vcc, 3, v4')
            a.e('v_mov_b32 v14, s40')
            a.e('v_cndmask_b32 v15, v14, v13, vcc')
            def d():
                a.e('s_lshl_b32 s41, s19, 10'); a.e('s_add_u32 s41, s41, %d' % WO)
            gather(24, 896, 13, 15, d)
        elif name == 'w1':
            srd(a, 24, 12, D*F*2)
            a.e('s_mul_hi_u32 s30, s19, 0x%x' % magic(112))
            a.e('s_mul_i32 s31, s30, 112')
            a.e('s_sub_u32 s31, s19, s31')
            a.e('s_lshr_b32 s32, s31, 3')
            a.e('s_and_b32 s33, s31, 7')
            a.e('s_lshl_b32 s34, s30, 3')
            a.e('s_add_u32 s34, s34, s33')
            a.e('s_lshl_b32 s34, s34, 4')
            a.e('v_add_u32 v5, s34, v3')
            a.e('s_lshl_b32 s34, s32, 5')
            a.e('v_lshl_add_u32 v13, v4, 2, s34')
            a.e('v_mul_u32_u24 v13, 3584, v13')
            a.e('v_lshl_add_u32 v13, v5, 1, v13')
            def d():
                a.e('s_lshl_b32 s41, s19, 10'); a.e('s_add_u32 s41, s41, %d' % W1)
            gather(24, 3584, 13, 13, d)
        elif name == 'w2':
            srd(a, 24, 14, F*D*2)
            a.e('s_mul_hi_u32 s30, s19, 0x%x' % magic(56))
            a.e('s_mul_i32 s31, s30, 56')
            a.e('s_sub_u32 s31, s19, s31')
            a.e('s_lshl_b32 s34, s30, 4')
            a.e('v_add_u32 v5, s34, v3')
            a.e('s_lshl_b32 s34, s31, 5')
            a.e('v_lshl_add_u32 v13, v4, 2, s34')
            a.e('v_mul_u32_u24 v13, 896, v13')
            a.e('v_lshl_add_u32 v13, v5, 1, v13')
            def d():
                a.e('s_lshl_b32 s41, s19, 10'); a.e('s_add_u32 s41, s41, %d' % W2)
            gather(24, 896, 13, 13, d)
        elif name == 'wphi':
            srd(a, 24, 8, H*DH*DH*2)
            a.e('s_lshr_b32 s30, s19, 1')
            a.e('s_and_b32 s31, s19, 1')
            a.e('s_lshl_b32 s34, s31, 4')
            a.e('v_add_u32 v5, s34, v3')
            a.e('v_lshlrev_b32 v13, 2, v4')
            a.e('v_mul_u32_u24 v13, 56, v13')
            a.e('v_lshl_add_u32 v13, v5, 1, v13')
            a.e('s_mul_i32 s34, s30, 1568')
            a.e('v_add_u32 v13, s34, v13')
            a.e('v_cmp_gt_u32 vcc, 28, v5')
            a.e('v_mov_b32 v14, s40')
            a.e('v_cndmask_b32 v13, v14, v13, vcc')
            a.e('v_cmp_gt_u32 vcc, 3, v4')
            a.e('s_nop 1')
            a.e('v_cndmask_b32 v15, v14, v13, vcc')
            def d():
                a.e('s_lshl_b32 s41, s19, 10'); a.e('s_add_u32 s41, s41, %d' % WPHI)
            gather(24, 56, 13, 15, d)
        elif name == 'zero':
            a.e('v_mov_b32 v8, 0'); a.e('v_mov_b32 v9, 0'); a.e('v_mov_b32 v10, 0'); a.e('v_mov_b32 v11, 0')
            a.e('s_lshl_b32 s41, s19, 10')
            a.e('s_add_u32 s41, s41, %d' % KV0)
            a.e('buffer_store_dwordx4 v[8:11], v2, s[20:23], s41 offen')
    a.label('K0_END')
    a.e('s_endpgm')
```

```python
from common import *
PK = 84*1024; PV = PK + 64*272; KVL = PV + 32*272; K1_LDS = KVL + 8192
def gen_k1(XIN, KVOFF):
  def fn(a):
    a.endlabel = 'K1_END_%d' % XIN
    prologue(a, 256)
    a.e('s_and_b32 s12, s2, 7'); a.e('s_lshr_b32 s13, s2, 3')
    a.e('s_and_b32 s14, s12, 1'); a.e('s_lshl_b32 s14, s14, 3'); a.e('s_lshr_b32 s15, s13, 2'); a.e('s_add_u32 s14, s14, s15')
    a.e('s_lshr_b32 s15, s12, 1'); a.e('s_lshl_b32 s15, s15, 2'); a.e('s_and_b32 s16, s13, 3'); a.e('s_add_u32 s15, s15, s16')
    a.e('s_mul_i32 s16, s14, %d' % (84*1024)); a.e('s_add_u32 s16, s16, %d' % WQ)
    a.e('s_lshl_b32 s17, s15, 3'); a.e('s_lshl_b32 s19, s3, 1'); a.e('s_add_u32 s17, s17, s19')
    a.e('s_mov_b32 s30, s17')
    a.e('s_mul_i32 s17, s17, %d' % (14*1024)); a.e('s_add_u32 s17, s17, %d' % XIN)
    a.e('s_add_u32 s18, s17, %d' % (14*1024))
    XB = lambda b, ks: 16 + (b*14+ks)*4
    AB = lambda buf, t: 128 + (buf*6+t)*4
    WP = 176; ONES = 184; ST = 188
    ACC = lambda t, b: (t*2+b)*4
    CS = lambda t: 48 + t*4
    a.e('s_lshl_b32 s19, s14, 11'); a.e('s_add_u32 s19, s19, %d' % WPHI)
    a.vmem('buffer_load_dwordx4 v[%d:%d], v1, s[8:11], s19 offen' % (WP, WP+3), 'wphi')
    a.vmem('buffer_load_dwordx4 v[%d:%d], v1, s[8:11], s19 offen offset:1024' % (WP+4, WP+7), 'wphi')
    for r in range(4): a.e('v_mov_b32 v%d, 0x3f803f80' % (ONES+r))
    chunks = [(0,4),(4,8),(8,12),(12,14)]
    for c,(k0_,k1_) in enumerate(chunks):
        nb = (k1_-k0_)*6; per = nb//4
        for i in range(per):
            a.e('s_mul_i32 s19, s3, %d' % per)
            a.e('s_add_u32 s19, s19, %d' % (k0_*6+i))
            a.e('s_lshl_b32 s19, s19, 10')
            a.e('s_mov_b32 m0, s19')
            a.e('s_add_u32 s19, s19, s16')
            a.vmem('buffer_load_dwordx4 v1, s[8:11], s19 offen lds', 'c%d' % c)
        for ks in range(k0_, k1_):
            for b in range(2):
                a.e('s_add_u32 s19, s%d, %d' % (17+b, ks*1024))
                a.vmem('buffer_load_dwordx4 v[%d:%d], v1, s[8:11], s19 offen' % (XB(b,ks), XB(b,ks)+3), 'c%d' % c)
    a.e('v_add_u32 v4, 0x10000, v1')
    def rdA(ks):
        for t in range(6):
            q = ks*6+t
            if q < 64: a.lds('ds_read_b128 v[%d:%d], v1 offset:%d' % (AB(ks&1,t), AB(ks&1,t)+3, q*1024), 'A%d' % ks)
            else: a.lds('ds_read_b128 v[%d:%d], v4 offset:%d' % (AB(ks&1,t), AB(ks&1,t)+3, (q-64)*1024), 'A%d' % ks)
    a.wait_vm('c0'); a.e('s_barrier')
    rdA(0)
    for ks in range(14):
        if ks+1 < 14:
            for c,(k0_,k1_) in enumerate(chunks):
                if k0_ == ks+1:
                    a.wait_vm('c%d' % c); a.e('s_barrier')
            rdA(ks+1)
        a.wait_lg('A%d' % ks)
        for t in range(6):
            A = 'v[%d:%d]' % (AB(ks&1,t), AB(ks&1,t)+3)
            for b in range(2):
                acc = 'a[%d:%d]' % (ACC(t,b), ACC(t,b)+3)
                a.e('v_mfma_f32_16x16x32_bf16 %s, %s, v[%d:%d], %s' % (acc, A, XB(b,ks), XB(b,ks)+3, '0' if ks == 0 else acc))
            acc = 'a[%d:%d]' % (CS(t), CS(t)+3)
            a.e('v_mfma_f32_16x16x32_bf16 %s, %s, v[%d:%d], %s' % (acc, A, ONES, ONES+3, '0' if ks == 0 else acc))
        for b in range(2):
            for r in range(4):
                x = XB(b,ks)+r
                first = (ks == 0 and r == 0)
                a.e('v_dot2_f32_bf16 v%d, v%d, v%d, %s' % (ST+2*b, x, ONES, '0' if first else 'v%d' % (ST+2*b)))
                a.e('v_dot2_f32_bf16 v%d, v%d, v%d, %s' % (ST+2*b+1, x, x, '0' if first else 'v%d' % (ST+2*b+1)))
    for r in range(4): xreduce(a, ST+r, 5, 'v_add_f32')
    ln_stats(a, ST, ST+1, 6, 7, 10, 11)
    ln_stats(a, ST+2, ST+3, 8, 9, 10, 11)
    for t in range(6):
        for i in range(4): a.e('v_accvgpr_read_b32 v%d, a%d' % (16+t*4+i, CS(t)+i))
    a.e('v_cmp_le_u32 s[32:33], 48, v0')
    a.e('v_mov_b32 v12, 0xff800000'); a.e('v_mov_b32 v13, 0x7f800000'); a.e('v_mov_b32 v14, 1.0')
    a.e('v_mov_b32 v15, %s' % LOG2E)
    a.e('v_mul_u32_u24 v40, %d, v3' % (4*272))
    a.e('s_lshl_b32 s19, s3, 6')
    a.e('v_lshl_add_u32 v40, v2, 1, v40')
    a.e('v_add_u32 v40, s19, v40')
    a.e('v_add_u32 v40, %d, v40' % PK)
    def softmax(X, outp, outm, T):
        for i in range(4):
            a.e('v_cndmask_b32 v%d, v%d, v12, s[32:33]' % (T+i, X+4+i))
            a.e('v_cndmask_b32 v%d, v%d, v13, s[32:33]' % (T+4+i, X+4+i))
        mx, mn, tp = T+8, T+9, T+10
        a.e('v_max3_f32 v%d, v%d, v%d, v%d' % (mx, X, X+1, X+2)); a.e('v_min3_f32 v%d, v%d, v%d, v%d' % (mn, X, X+1, X+2))
        a.e('v_max3_f32 v%d, v%d, v%d, v%d' % (mx, mx, X+3, T)); a.e('v_min3_f32 v%d, v%d, v%d, v%d' % (mn, mn, X+3, T+4))
        a.e('v_max3_f32 v%d, v%d, v%d, v%d' % (mx, mx, T+1, T+2)); a.e('v_min3_f32 v%d, v%d, v%d, v%d' % (mn, mn, T+5, T+6))
        a.e('v_max_f32 v%d, v%d, v%d' % (mx, mx, T+3)); a.e('v_min_f32 v%d, v%d, v%d' % (mn, mn, T+7))
        xreduce(a, mx, tp, 'v_max_f32'); xreduce(a, mn, tp, 'v_min_f32')
        a.e('v_mul_f32 v%d, v15, v%d' % (mx, mx)); a.e('v_mul_f32 v%d, v15, v%d' % (mn, mn))
        EP, EM = T+12, T+20
        for i in range(8):
            xm = X+i if i < 4 else T+i-4
            xp = X+i if i < 4 else T+i
            a.e('v_fma_f32 v%d, v%d, v15, -v%d' % (EP+i, xm, mx))
            a.e('v_fma_f32 v%d, -v%d, v15, v%d' % (EM+i, xp, mn))
        for i in range(8):
            a.e('v_exp_f32 v%d, v%d' % (EP+i, EP+i)); a.e('v_exp_f32 v%d, v%d' % (EM+i, EM+i))
        sp, sm = T+8, T+9
        a.e('v_add_f32 v%d, v%d, v%d' % (sp, EP, EP+1)); a.e('v_add_f32 v%d, v%d, v%d' % (sm, EM, EM+1))
        for i in range(2, 8):
            a.e('v_add_f32 v%d, v%d, v%d' % (sp, sp, EP+i)); a.e('v_add_f32 v%d, v%d, v%d' % (sm, sm, EM+i))
        xreduce(a, sp, tp, 'v_add_f32'); xreduce(a, sm, tp, 'v_add_f32')
        a.e('v_rcp_f32 v%d, v%d' % (sp, sp)); a.e('v_rcp_f32 v%d, v%d' % (sm, sm))
        for i in range(8):
            a.e('v_mul_f32 v%d, v%d, v%d' % (EP+i, EP+i, sp)); a.e('v_mul_f32 v%d, v%d, v%d' % (EM+i, EM+i, sm))
        for q in range(4):
            a.e('v_cvt_pk_bf16_f32 v%d, v%d, v%d' % (outp+q, EP+2*q, EP+2*q+1))
            a.e('v_cvt_pk_bf16_f32 v%d, v%d, v%d' % (outm+q, EM+2*q, EM+2*q+1))
    Z = 48
    BQ = 72
    P = 84
    OUTP, OUTM = 100, 104
    T = 108
    for b in range(2):
        mb, ri = (6, 7) if b == 0 else (8, 9)
        for t in range(6):
            for i in range(4):
                z = Z+t*4+i
                a.e('v_accvgpr_read_b32 v%d, a%d' % (z, ACC(t,b)+i))
                a.e('v_fma_f32 v%d, -v%d, v%d, v%d' % (z, mb, 16+t*4+i, z))
                a.e('v_mul_f32 v%d, v%d, v%d' % (z, z, ri))
        a.e('v_cndmask_b32 v%d, v%d, v14, s[32:33]' % (Z+20, Z+20))
        for m in range(3):
            for q in range(4):
                a.e('v_cvt_pk_bf16_f32 v%d, v%d, v%d' % (BQ+m*4+q, Z+m*8+2*q, Z+m*8+2*q+1))
        for m in range(2):
            for ft in range(2):
                a.e('v_mfma_f32_16x16x32_bf16 v[%d:%d], v[%d:%d], v[%d:%d], 0' % (92+ft*4, 92+ft*4+3, WP+ft*4, WP+ft*4+3, BQ+m*4, BQ+m*4+3))
            for q in range(4):
                a.e('v_cvt_pk_bf16_f32 v%d, v%d, v%d' % (T, 92+2*q, 92+2*q+1))
                unpack(a, P+2*q, P+2*q+1, T)
            softmax(P, OUTP, OUTM, T)
            if m == 0:
                a.e('s_add_u32 s19, s30, %d' % b); a.e('s_lshl_b32 s19, s19, 4'); a.e('s_add_u32 s19, s19, s14')
                a.e('s_lshl_b32 s19, s19, 11'); a.e('s_add_u32 s19, s19, %d' % PHIQ)
                a.vmem('buffer_store_dwordx4 v[%d:%d], v1, s[8:11], s19 offen' % (OUTP, OUTP+3), 'st')
                a.vmem('buffer_store_dwordx4 v[%d:%d], v1, s[8:11], s19 offen offset:1024' % (OUTM, OUTM+3), 'st')
            else:
                offs = [0, 544, 16*272, 16*272+544]
                for q in range(4):
                    for base, reg in ((0, OUTP+q), (32*272, OUTM+q)):
                        o = base + offs[q] + 32*b
                        a.lds('ds_write_b16 v40, v%d offset:%d' % (reg, o), 'w')
                        a.lds('ds_write_b16_d16_hi v40, v%d offset:%d' % (reg, o+272), 'w')
                for q in range(4):
                    o = PV - PK + offs[q] + 32*b
                    a.lds('ds_write_b16 v40, v%d offset:%d' % (BQ+8+q, o), 'w')
                    a.lds('ds_write_b16_d16_hi v40, v%d offset:%d' % (BQ+8+q, o+272), 'w')
    a.wait_lg(None); a.e('s_barrier')
    a.e('s_lshl_b32 s19, s3, 4')
    a.e('v_add_u32 v41, s19, v2'); a.e('v_mul_u32_u24 v41, 272, v41'); a.e('v_lshl_add_u32 v41, v3, 4, v41'); a.e('v_add_u32 v41, %d, v41' % PK)
    a.e('v_mul_u32_u24 v42, 272, v2'); a.e('v_lshl_add_u32 v42, v3, 4, v42'); a.e('v_add_u32 v42, %d, v42' % PV)
    FA, FB, KA = 48, 64, 112
    for kk in range(4):
        a.lds('ds_read_b128 v[%d:%d], v41 offset:%d' % (FA+kk*4, FA+kk*4+3, 64*kk), 'fa%d' % kk)
        for dt in range(2):
            a.lds('ds_read_b128 v[%d:%d], v42 offset:%d' % (FB+(kk*2+dt)*4, FB+(kk*2+dt)*4+3, 16*272*dt+64*kk), 'fa%d' % kk)
    for kk in range(4):
        a.wait_lg('fa%d' % kk)
        for dt in range(2):
            acc = 'v[%d:%d]' % (KA+dt*4, KA+dt*4+3)
            a.e('v_mfma_f32_16x16x32_bf16 %s, v[%d:%d], v[%d:%d], %s' % (acc, FA+kk*4, FA+kk*4+3, FB+(kk*2+dt)*4, FB+(kk*2+dt)*4+3, '0' if kk == 0 else acc))
    a.e('s_lshr_b32 s19, s3, 1'); a.e('s_lshl_b32 s19, s19, 11')
    a.e('s_and_b32 s20, s3, 1'); a.e('s_lshl_b32 s20, s20, 4'); a.e('s_add_u32 s19, s19, s20')
    a.e('v_lshlrev_b32 v43, 5, v0'); a.e('v_add_u32 v43, s19, v43'); a.e('v_add_u32 v43, %d, v43' % KVL)
    for dt in range(2):
        a.lds('ds_write_b128 v43, v[%d:%d] offset:%d' % (KA+dt*4, KA+dt*4+3, dt*4096), 'w')
    a.wait_lg(None); a.e('s_barrier')
    a.e('v_lshlrev_b32 v43, 2, v0'); a.e('s_lshl_b32 s19, s3, 11'); a.e('v_add_u32 v44, s19, v43'); a.e('v_add_u32 v44, %d, v44' % KVL)
    for i in range(8):
        a.lds('ds_read_b32 v%d, v44 offset:%d' % (48+i, 256*i), 'r%d' % i)
    a.e('s_lshl_b32 s19, s14, 13'); a.e('s_lshl_b32 s20, s3, 11'); a.e('s_add_u32 s19, s19, s20'); a.e('s_add_u32 s19, s19, %d' % KVOFF)
    for i in range(8):
        a.wait_lg('r%d' % i)
        a.vmem('buffer_atomic_add_f32 v%d, v43, s[8:11], s19 offen offset:%d' % (48+i, 256*i), 'at')
    a.label(a.endlabel)
    a.e('s_endpgm')
  return fn
```

```python
from common import *

def wg_map_7x32(a):
    a.e('s_and_b32 s14, s2, 7'); a.e('s_lshr_b32 s15, s2, 3')
    a.e('s_mul_hi_u32 s16, s15, 0x%x' % ((2**32+6)//7))
    a.e('s_mul_i32 s17, s16, 7'); a.e('s_sub_u32 s12, s15, s17')
    a.e('s_lshl_b32 s13, s14, 2'); a.e('s_add_u32 s13, s13, s16')

def reduce_epilogue(a, acc_reg, is_agpr, XRES, OUT, final, bias):
    pre = 'a' if is_agpr else 'v'
    a.e('s_lshl_b32 s19, s3, 14'); a.e('v_add_u32 v4, s19, v1')
    for t in range(16):
        r = acc_reg + t*4
        a.lds('ds_write_b128 v4, %s[%d:%d] offset:%d' % (pre, r, r+3, t*1024), 'w')
    a.e('s_lshl_b32 s19, s13, 2'); a.e('s_add_u32 s19, s19, s3'); a.e('s_mul_i32 s19, s19, %d' % (14*1024))
    a.e('s_lshl_b32 s20, s12, 11'); a.e('s_add_u32 s19, s19, s20')
    a.e('s_add_u32 s21, s19, %d' % XRES)
    a.vmem('buffer_load_dwordx4 v[80:83], v1, s[8:11], s21 offen', 'res')
    a.vmem('buffer_load_dwordx4 v[84:87], v1, s[8:11], s21 offen offset:1024', 'res')
    if bias:
        a.e('s_lshl_b32 s20, s12, 7')
        a.e('v_lshl_add_u32 v5, v3, 3, s20')
        for t in range(4):
            a.vmem('buffer_load_dwordx2 v[%d:%d], v5, s[24:27], 0 offen offset:%d' % (88+2*t, 89+2*t, 32*t), 'res')
    a.wait_lg(None); a.e('s_barrier')
    a.e('s_lshl_b32 s20, s3, 10'); a.e('v_add_u32 v4, s20, v1')
    for ww in range(4):
        for t in range(4):
            a.lds('ds_read_b128 v[%d:%d], v4 offset:%d' % (16+(ww*4+t)*4, 16+(ww*4+t)*4+3, ww*16384 + t*4096), 'r%d' % ww)
    a.wait_lg('r1')
    for t in range(4):
        for i in range(4): a.e('v_add_f32 v%d, v%d, v%d' % (16+t*4+i, 16+t*4+i, 32+t*4+i))
    a.wait_lg('r3')
    for t in range(4):
        for i in range(4):
            a.e('v_add_f32 v%d, v%d, v%d' % (48+t*4+i, 48+t*4+i, 64+t*4+i))
            a.e('v_add_f32 v%d, v%d, v%d' % (16+t*4+i, 16+t*4+i, 48+t*4+i))
    a.wait_vm('res')
    for q in range(8):
        x0, x1 = 16+2*q, 17+2*q
        a.e('v_cvt_pk_bf16_f32 v6, v%d, v%d' % (x0, x1)); unpack(a, x0, x1, 6)
        if bias:
            unpack(a, 7, 8, 88+q)
            a.e('v_add_f32 v%d, v%d, v7' % (x0, x0)); a.e('v_add_f32 v%d, v%d, v8' % (x1, x1))
            a.e('v_cvt_pk_bf16_f32 v6, v%d, v%d' % (x0, x1)); unpack(a, x0, x1, 6)
        unpack(a, 7, 8, 80+q)
        a.e('v_add_f32 v%d, v%d, v7' % (x0, x0)); a.e('v_add_f32 v%d, v%d, v8' % (x1, x1))
        a.e('v_cvt_pk_bf16_f32 v%d, v%d, v%d' % (96+q, x0, x1))
    if not final:
        a.e('s_add_u32 s21, s19, %d' % OUT)
        a.vmem('buffer_store_dwordx4 v[96:99], v1, s[8:11], s21 offen', 'st')
        a.vmem('buffer_store_dwordx4 v[100:103], v1, s[8:11], s21 offen offset:1024', 'st')
    else:
        a.e('s_lshl_b32 s20, s13, 2'); a.e('s_add_u32 s20, s20, s3'); a.e('s_lshl_b32 s20, s20, 4')
        a.e('v_add_u32 v5, s20, v2'); a.e('v_mul_u32_u24 v5, 896, v5')
        a.e('v_lshl_add_u32 v5, v3, 3, v5'); a.e('s_lshl_b32 s20, s12, 7'); a.e('v_add_u32 v5, s20, v5')
        for t in range(4):
            a.vmem('buffer_store_dwordx2 v[%d:%d], v5, s[28:31], 0 offen offset:%d' % (96+2*t, 97+2*t, 32*t), 'st')

RED_LDS = 65536
def gen_k4(XRES, OUT, final):
  def fn(a):
    a.endlabel = 'K4_END_%d' % XRES
    a.e('s_load_dwordx2 s[6:7], s[0:1], 64')
    a.e('s_load_dwordx2 s[22:23], s[0:1], 72')
    prologue(a, 224)
    srd(a, 24, 6, D*2)
    srd(a, 28, 22, S*D*2)
    wg_map_7x32(a)
    a.e('s_mul_i32 s19, s3, 14')
    for i in range(4):
        a.e('s_lshl_b32 s20, s12, 2'); a.e('s_add_u32 s20, s20, %d' % i); a.e('s_mul_i32 s20, s20, 56'); a.e('s_add_u32 s20, s20, s19')
        a.e('s_lshl_b32 s20, s20, 10'); a.e('s_add_u32 s%d, s20, %d' % (40+i, W2))
        a.e('s_lshl_b32 s20, s13, 2'); a.e('s_add_u32 s20, s20, %d' % i); a.e('s_mul_i32 s20, s20, 56'); a.e('s_add_u32 s20, s20, s19')
        a.e('s_lshl_b32 s20, s20, 10'); a.e('s_add_u32 s%d, s20, %d' % (44+i, HB))
    NB = 4
    def issue(j):
        base = 16 + (j % NB)*32
        for i in range(8):
            a.vmem('buffer_load_dwordx4 v[%d:%d], v1, s[8:11], s%d offen' % (base+4*i, base+4*i+3, 40+i), 'j%d' % j)
        for i in range(8): a.e('s_add_u32 s%d, s%d, 1024' % (40+i, 40+i))
    for j in range(NB): issue(j)
    for j in range(14):
        a.wait_vm('j%d' % j)
        base = 16 + (j % NB)*32
        for ai in range(4):
            for bi in range(4):
                acc = 'a[%d:%d]' % ((ai*4+bi)*4, (ai*4+bi)*4+3)
                a.e('v_mfma_f32_16x16x32_bf16 %s, v[%d:%d], v[%d:%d], %s' % (acc, base+4*ai, base+4*ai+3, base+16+4*bi, base+16+4*bi+3, '0' if j == 0 else acc))
        if j+NB < 14: issue(j+NB)
    reduce_epilogue(a, 0, True, XRES, OUT, final, True)
    a.label(a.endlabel); a.e('s_endpgm')
  return fn

def gen_k2(XRES, KVOFF, OUT):
  def fn(a):
    a.endlabel = 'K2_END_%d' % XRES
    prologue(a, 224)
    wg_map_7x32(a)
    a.e('v_lshlrev_b32 v4, 5, v0')
    a.e('s_lshl_b32 s19, s3, 15'); a.e('s_add_u32 s19, s19, %d' % KVOFF)
    for blk in range(16):
        a.e('s_add_u32 s20, s19, %d' % (blk*2048))
        a.vmem('buffer_load_dwordx4 v[%d:%d], v4, s[8:11], s20 offen' % (16+blk*8, 16+blk*8+3), 'kv')
        a.vmem('buffer_load_dwordx4 v[%d:%d], v4, s[8:11], s20 offen offset:16' % (16+blk*8+4, 16+blk*8+7), 'kv')
    for ai in range(4):
        for hh in range(4):
            a.e('s_lshl_b32 s20, s12, 2'); a.e('s_add_u32 s20, s20, %d' % ai); a.e('s_lshl_b32 s20, s20, 4')
            a.e('s_lshl_b32 s21, s3, 2'); a.e('s_add_u32 s20, s20, s21'); a.e('s_add_u32 s20, s20, %d' % hh)
            a.e('s_lshl_b32 s20, s20, 10'); a.e('s_add_u32 s20, s20, %d' % WO)
            r = (ai*4+hh)*4
            a.vmem('buffer_load_dwordx4 a[%d:%d], v1, s[8:11], s20 offen' % (r, r+3), 'wo')
    for b in range(4):
        for hh in range(4):
            a.e('s_lshl_b32 s20, s13, 2'); a.e('s_add_u32 s20, s20, %d' % b); a.e('s_lshl_b32 s20, s20, 4')
            a.e('s_lshl_b32 s21, s3, 2'); a.e('s_add_u32 s20, s20, s21'); a.e('s_add_u32 s20, s20, %d' % hh)
            a.e('s_lshl_b32 s20, s20, 11'); a.e('s_add_u32 s20, s20, %d' % PHIQ)
            r = 64 + (b*4+hh)*8
            a.vmem('buffer_load_dwordx4 a[%d:%d], v1, s[8:11], s20 offen' % (r, r+3), 'pq%d' % b)
            a.vmem('buffer_load_dwordx4 a[%d:%d], v1, s[8:11], s20 offen offset:1024' % (r+4, r+7), 'pq%d' % b)
    a.e('v_add_u32 v5, 48, v2'); a.e('v_lshlrev_b32 v5, 2, v5')
    a.e('v_mov_b32 v6, 0x358637bd')
    a.wait_vm('kv')
    KVA = lambda hh, dt, st: 144 + ((hh*2+dt)*2+st)*4
    for blk in range(16):
        for q in range(4):
            a.e('v_cvt_pk_bf16_f32 v%d, v%d, v%d' % (144+blk*4+q, 16+blk*8+2*q, 16+blk*8+2*q+1))
    a.wait_vm('wo')
    ACC = 16; OT = 80; DEN = 112; BO = 116; TM = 120
    for b in range(4):
        a.wait_vm('pq%d' % b)
        for hh in range(4):
            for dt in range(2):
                o = OT + hh*8 + dt*4
                pq = 64 + (b*4+hh)*8
                a.e('v_mfma_f32_16x16x32_bf16 v[%d:%d], v[%d:%d], a[%d:%d], 0' % (o, o+3, KVA(hh,dt,0), KVA(hh,dt,0)+3, pq, pq+3))
                a.e('v_mfma_f32_16x16x32_bf16 v[%d:%d], v[%d:%d], a[%d:%d], v[%d:%d]' % (o, o+3, KVA(hh,dt,1), KVA(hh,dt,1)+3, pq+4, pq+7, o, o+3))
        for hh in range(4):
            a.lds('ds_bpermute_b32 v%d, v5, v%d' % (DEN+hh, OT+hh*8+4), 'den')
        a.wait_lg('den')
        for hh in range(4):
            o = OT + hh*8; dn = DEN+hh
            bf16r(a, dn, dn, TM); a.e('v_add_f32 v%d, v%d, v6' % (dn, dn)); bf16r(a, dn, dn, TM)
            a.e('v_rcp_f32 v%d, v%d' % (dn, dn))
            for q in range(4):
                a.e('v_cvt_pk_bf16_f32 v%d, v%d, v%d' % (TM, o+2*q, o+2*q+1)); unpack(a, o+2*q, o+2*q+1, TM)
                a.e('v_mul_f32 v%d, v%d, v%d' % (o+2*q, o+2*q, dn)); a.e('v_mul_f32 v%d, v%d, v%d' % (o+2*q+1, o+2*q+1, dn))
                a.e('v_cvt_pk_bf16_f32 v%d, v%d, v%d' % (BO+q, o+2*q, o+2*q+1))
            for ai in range(4):
                acc = 'v[%d:%d]' % (ACC+(ai*4+b)*4, ACC+(ai*4+b)*4+3)
                a.e('v_mfma_f32_16x16x32_bf16 %s, a[%d:%d], v[%d:%d], %s' % (acc, (ai*4+hh)*4, (ai*4+hh)*4+3, BO, BO+3, '0' if hh == 0 else acc))
    reduce_epilogue(a, ACC, False, XRES, OUT, False, False)
    a.label(a.endlabel); a.e('s_endpgm')
  return fn

K3_LDS = 112*1024
def gen_k3(XIN):
  def fn(a):
    a.endlabel = 'K3_END_%d' % XIN
    a.e('s_load_dwordx2 s[6:7], s[0:1], 48')
    prologue(a, 224)
    srd(a, 24, 6, F*2)
    a.e('s_and_b32 s14, s2, 7'); a.e('s_lshr_b32 s15, s2, 3')
    a.e('s_mul_hi_u32 s16, s15, 0x%x' % ((2**32+13)//14)); a.e('s_mul_i32 s17, s16, 14'); a.e('s_sub_u32 s12, s15, s17')
    a.e('s_lshl_b32 s13, s14, 1'); a.e('s_add_u32 s13, s13, s16')
    a.e('s_mul_i32 s16, s12, %d' % (112*1024)); a.e('s_add_u32 s16, s16, %d' % W1)
    a.e('s_lshl_b32 s17, s13, 3'); a.e('s_lshl_b32 s19, s3, 1'); a.e('s_add_u32 s17, s17, s19'); a.e('s_mov_b32 s30, s17')
    a.e('s_mul_i32 s17, s17, %d' % (14*1024)); a.e('s_add_u32 s17, s17, %d' % XIN); a.e('s_add_u32 s18, s17, %d' % (14*1024))
    XB = lambda b, ks: 16 + (b*14+ks)*4
    AB = lambda buf, t: 128 + (buf*8+t)*4
    ONES = 192; ST = 196; B1 = 200
    ACC = lambda t, b: (t*2+b)*4
    CS = lambda t: 64 + t*4
    a.e('s_lshl_b32 s20, s12, 8'); a.e('v_lshl_add_u32 v5, v3, 3, s20')
    for t in range(8):
        a.vmem('buffer_load_dwordx2 v[%d:%d], v5, s[24:27], 0 offen offset:%d' % (B1+2*t, B1+2*t+1, 32*t), 'b1')
    for r in range(4): a.e('v_mov_b32 v%d, 0x3f803f80' % (ONES+r))
    chunks = [(0,4),(4,8),(8,12),(12,14)]
    for c,(k0_,k1_) in enumerate(chunks):
        per = (k1_-k0_)*8//4
        for i in range(per):
            a.e('s_mul_i32 s19, s3, %d' % per); a.e('s_add_u32 s19, s19, %d' % (k0_*8+i)); a.e('s_lshl_b32 s19, s19, 10')
            a.e('s_mov_b32 m0, s19'); a.e('s_add_u32 s19, s19, s16')
            a.vmem('buffer_load_dwordx4 v1, s[8:11], s19 offen lds', 'c%d' % c)
        for ks in range(k0_, k1_):
            for b in range(2):
                a.e('s_add_u32 s19, s%d, %d' % (17+b, ks*1024))
                a.vmem('buffer_load_dwordx4 v[%d:%d], v1, s[8:11], s19 offen' % (XB(b,ks), XB(b,ks)+3), 'c%d' % c)
    a.e('v_add_u32 v4, 0x10000, v1')
    def rdA(ks):
        for t in range(8):
            q = ks*8+t
            if q < 64: a.lds('ds_read_b128 v[%d:%d], v1 offset:%d' % (AB(ks&1,t), AB(ks&1,t)+3, q*1024), 'A%d' % ks)
            else: a.lds('ds_read_b128 v[%d:%d], v4 offset:%d' % (AB(ks&1,t), AB(ks&1,t)+3, (q-64)*1024), 'A%d' % ks)
    a.wait_vm('c0'); a.e('s_barrier')
    rdA(0)
    for ks in range(14):
        if ks+1 < 14:
            for c,(k0_,k1_) in enumerate(chunks):
                if k0_ == ks+1:
                    a.wait_vm('c%d' % c); a.e('s_barrier')
            rdA(ks+1)
        a.wait_lg('A%d' % ks)
        for t in range(8):
            A = 'v[%d:%d]' % (AB(ks&1,t), AB(ks&1,t)+3)
            for b in range(2):
                acc = 'a[%d:%d]' % (ACC(t,b), ACC(t,b)+3)
                a.e('v_mfma_f32_16x16x32_bf16 %s, %s, v[%d:%d], %s' % (acc, A, XB(b,ks), XB(b,ks)+3, '0' if ks == 0 else acc))
            acc = 'a[%d:%d]' % (CS(t), CS(t)+3)
            a.e('v_mfma_f32_16x16x32_bf16 %s, %s, v[%d:%d], %s' % (acc, A, ONES, ONES+3, '0' if ks == 0 else acc))
        for b in range(2):
            for r in range(4):
                x = XB(b,ks)+r; first = (ks == 0 and r == 0)
                a.e('v_dot2_f32_bf16 v%d, v%d, v%d, %s' % (ST+2*b, x, ONES, '0' if first else 'v%d' % (ST+2*b)))
                a.e('v_dot2_f32_bf16 v%d, v%d, v%d, %s' % (ST+2*b+1, x, x, '0' if first else 'v%d' % (ST+2*b+1)))
    for r in range(4): xreduce(a, ST+r, 5, 'v_add_f32')
    ln_stats(a, ST, ST+1, 6, 7, 10, 11); ln_stats(a, ST+2, ST+3, 8, 9, 10, 11)
    for t in range(8):
        for i in range(4): a.e('v_accvgpr_read_b32 v%d, a%d' % (16+t*4+i, CS(t)+i))
    a.wait_vm('b1')
    for t in range(8): unpack(a, 48+4*t, 49+4*t, B1+2*t); unpack(a, 50+4*t, 51+4*t, B1+2*t+1)
    for b in range(2):
        mb, ri = (6, 7) if b == 0 else (8, 9)
        for p in range(4):
            for tt in range(2):
                t = 2*p+tt
                for i in range(4):
                    z = 80+tt*4+i
                    a.e('v_accvgpr_read_b32 v%d, a%d' % (z, ACC(t,b)+i))
                    a.e('v_fma_f32 v%d, -v%d, v%d, v%d' % (z, mb, 16+t*4+i, z))
                    a.e('v_mul_f32 v%d, v%d, v%d' % (z, z, ri))
            for q in range(4):
                x0, x1 = 80+2*q, 81+2*q
                t = 2*p + q//2; i = (q%2)*2
                a.e('v_cvt_pk_bf16_f32 v12, v%d, v%d' % (x0, x1)); unpack(a, x0, x1, 12)
                a.e('v_add_f32 v%d, v%d, v%d' % (x0, x0, 48+4*t+i)); a.e('v_add_f32 v%d, v%d, v%d' % (x1, x1, 48+4*t+i+1))
                a.e('v_cvt_pk_bf16_f32 v12, v%d, v%d' % (x0, x1)); unpack(a, x0, x1, 12)
                a.e('v_max_f32 v%d, 0, v%d' % (x0, x0)); a.e('v_max_f32 v%d, 0, v%d' % (x1, x1))
                a.e('v_mul_f32 v%d, v%d, v%d' % (x0, x0, x0)); a.e('v_mul_f32 v%d, v%d, v%d' % (x1, x1, x1))
                a.e('v_cvt_pk_bf16_f32 v%d, v%d, v%d' % (88+q, x0, x1))
            a.e('s_add_u32 s19, s30, %d' % b); a.e('s_mul_i32 s19, s19, 56'); a.e('s_lshl_b32 s20, s12, 2'); a.e('s_add_u32 s19, s19, s20')
            a.e('s_add_u32 s19, s19, %d' % p); a.e('s_lshl_b32 s19, s19, 10'); a.e('s_add_u32 s19, s19, %d' % HB)
            a.vmem('buffer_store_dwordx4 v[88:91], v1, s[8:11], s19 offen', 'st')
    a.label(a.endlabel); a.e('s_endpgm')
  return fn
```

```python
import k0, k1, k234
from layout import *
KERNELS = {'prep_kernel': (k0.gen_k0, 24, 0, 56),
           'qkv0_kernel': (k1.gen_k1(XT, KV0), 192, 72, 56),
           'wo0_kernel': (k234.gen_k2(XT, KV0, X1), 208, 192, 56),
           'ffa0_kernel': (k234.gen_k3(X1), 216, 96, 56),
           'ffb0_kernel': (k234.gen_k4(X1, X2, False), 144, 64, 56),
           'qkv1_kernel': (k1.gen_k1(X2, KV1), 192, 72, 56),
           'wo1_kernel': (k234.gen_k2(X2, KV1, X3), 208, 192, 56),
           'ffa1_kernel': (k234.gen_k3(X3), 216, 96, 56),
           'ffb1_kernel': (k234.gen_k4(X3, 0, True), 144, 64, 56),
           }
LAUNCHES = [('prep_kernel', (k0.K0_WGS,1,1), (256,1,1), 0),
            ('qkv0_kernel', (256,1,1), (256,1,1), k1.K1_LDS),
            ('wo0_kernel', (224,1,1), (256,1,1), k234.RED_LDS),
            ('ffa0_kernel', (224,1,1), (256,1,1), k234.K3_LDS),
            ('ffb0_kernel', (224,1,1), (256,1,1), k234.RED_LDS),
            ('qkv1_kernel', (256,1,1), (256,1,1), k1.K1_LDS),
            ('wo1_kernel', (224,1,1), (256,1,1), k234.RED_LDS),
            ('ffa1_kernel', (224,1,1), (256,1,1), k234.K3_LDS),
            ('ffb1_kernel', (224,1,1), (256,1,1), k234.RED_LDS)]
```

```python
import sys, importlib
from core import *
from layout import *
import k0

NAME = 'interleave_layers__linear_kernel_hedgehog__dense_activation_squared_relu__prompt'
HEADER = open('cdna_kernels/%s.s.ref' % NAME).read().split('; Override launch geometry')[0]

def build(kernels, launches):
    out = [HEADER.rstrip('\n')]
    for (lab, g, b, lds) in launches:
        out.append('; @launch kernel=%s grid=(%d,%d,%d) block=(%d,%d,%d) lds=%d' % (lab, *g, *b, lds))
    out.append('.amdgcn_target "amdgcn-amd-amdhsa--gfx950"')
    out.append('.text')
    for lab, (fn, nv, na, ns) in kernels.items():
        a = Asm()
        fn(a)
        out.append('.globl %s' % lab)
        out.append('.p2align 8')
        out.append('.type %s,@function' % lab)
        out.append('%s:' % lab)
        out.append(a.text().rstrip('\n'))
    out.append('.section .rodata,"a"')
    for lab, (fn, nv, na, ns) in kernels.items():
        acc = (nv + 3)//4*4
        out.append('.p2align 6')
        out.append('.amdhsa_kernel %s' % lab)
        out.append('  .amdhsa_next_free_vgpr %d' % (acc + na if na else nv))
        out.append('  .amdhsa_next_free_sgpr %d' % ns)
        out.append('  .amdhsa_accum_offset %d' % acc)
        out.append('  .amdhsa_group_segment_fixed_size 0')
        out.append('  .amdhsa_kernarg_size 96')
        out.append('  .amdhsa_user_sgpr_count 2')
        out.append('  .amdhsa_user_sgpr_kernarg_segment_ptr 1')
        out.append('  .amdhsa_system_sgpr_workgroup_id_x 1')
        out.append('.end_amdhsa_kernel')
    return '\n'.join(out) + '\n'

if __name__ == '__main__':
    import plan
    txt = build(plan.KERNELS, plan.LAUNCHES)
    dst = sys.argv[1] if len(sys.argv) > 1 else 'cdna_kernels/%s.s' % NAME
    open(dst, 'w').write(txt)
    print('wrote', dst, len(txt))
```
